```python
import torch

def _softmax(x, axis=-1):
    return torch.softmax(x, dim=axis)
def _gelu(x):
    return torch.nn.functional.gelu(x, approximate="tanh")
def _silu(x):
    return torch.nn.functional.silu(x)
def _sigmoid(x):
    return torch.sigmoid(x)
def _layernorm(x, axis=-1, eps=1e-5):
    m = x.mean(dim=axis, keepdim=True)
    v = x.var(dim=axis, keepdim=True, unbiased=False)
    return (x - m) / torch.sqrt(v + eps)
def _scatter_add(tgt, idx, src, axis=0):
    return tgt.clone().index_add_(axis, idx, src)
def _segment_sum(src, seg, n):
    out = torch.zeros((n,) + src.shape[1:], dtype=src.dtype)
    return out.index_add_(0, seg, src)
def _pad(x, pw):
    flat = tuple(v for pair in reversed(pw) for v in pair)
    return torch.nn.functional.pad(x, flat)

kernel_name = 'recurrent_scan__sliding_local_dilated__glu_gated_reglu__prompt'

def setup_inputs():

    _w = (lambda a: (lambda t: t.to(torch.bfloat16) if t.is_floating_point() else t)(torch.as_tensor(a)))
    def _A_setup():
        B, S, D = 1, 2048, 576
        return {
            "x": _w((lambda *s: torch.randn(*s, dtype=torch.bfloat16) * 0.05)(B, S, D)),
            "wqkv": _w((lambda *s: torch.randn(*s, dtype=torch.bfloat16) * 0.2)(D, 3 * D)),
            "wo": _w((lambda *s: torch.randn(*s, dtype=torch.bfloat16) * 0.2)(D, D)),
        }
    _A_in = _A_setup()

    def _B_setup():
        B, S, D, F = 1, 2048, 576, 4608
        return {
            "x": _w((lambda *s: torch.randn(*s, dtype=torch.bfloat16) * 0.05)(B, S, D)),
            "W_gate": _w((lambda *s: torch.randn(*s, dtype=torch.bfloat16) * 0.1)(D, F) * (2.0 / D) ** 0.5),
            "W_up": _w((lambda *s: torch.randn(*s, dtype=torch.bfloat16) * 0.1)(D, F) * (2.0 / D) ** 0.5),
            "W_down": _w((lambda *s: torch.randn(*s, dtype=torch.bfloat16) * 0.1)(F, D) * (1.0 / F) ** 0.5),
        }
    _B_in = _B_setup()

    return {
        "A_x": _A_in["x"],
        "A_wqkv": _A_in["wqkv"],
        "A_wo": _A_in["wo"],
        "B_x": _B_in["x"],
        "B_W_gate": _B_in["W_gate"],
        "B_W_up": _B_in["W_up"],
        "B_W_down": _B_in["W_down"],
    }

def reference(A_x, A_wqkv, A_wo, B_x, B_W_gate, B_W_up, B_W_down):
    def _A_ref(x, wqkv, wo):
        B, S, D = x.shape
        H = 32; Dh = D // H
        W, dil = 8, 2
        qkv = (lambda x, *d: x.permute(*d))((x @ wqkv).reshape(B, S, 3, H, Dh), 2, 0, 3, 1, 4)
        q, k, v = qkv[0], qkv[1], qkv[2]
        scale = Dh ** -0.5
        pos = torch.arange(S)
        off = torch.arange(W) * dil
        idx = pos[:, None] - off[None, :]
        mask = idx >= 0
        idx_c = torch.where(mask, idx, 0).reshape(-1)
        kg = k[:, :, idx_c, :].reshape(B, H, S, W, Dh)
        vg = v[:, :, idx_c, :].reshape(B, H, S, W, Dh)
        logits = torch.einsum("bhsd,bhswd->bhsw", q, kg) * scale
        logits = torch.where(mask[None, None, :, :], logits, -1e9)
        attn = _softmax(logits, axis=-1)
        o = torch.einsum("bhsw,bhswd->bhsd", attn, vg)
        return (lambda x, *d: x.permute(*d))(o, 0, 2, 1, 3).reshape(B, S, D) @ wo

    def _B_ref(x, W_gate, W_up, W_down):
        gate = torch.einsum("bsd,df->bsf", x, W_gate)
        up = torch.einsum("bsd,df->bsf", x, W_up)
        gate = gate * (lambda x, dt: x.to(dt))(gate > 0, gate.dtype)
        h = gate * up
        return torch.einsum("bsf,fd->bsd", h, W_down)

    x = A_x
    xn = _layernorm(x, axis=-1)
    s = _A_ref(xn, A_wqkv, A_wo)
    g = _silu(_B_ref(xn, B_W_gate, B_W_up, B_W_down))
    return x + s * g
```

```python
import copy
class Emit:
    def __init__(self):
        self.lines = []
        self.lds = []
        self.vm = []
        self.issued = set()
        self._lab = 0
    def raw(self, s):
        for l in s.split("\n"):
            l = l.strip()
            if l: self.lines.append(l if l.endswith(":") else "    " + l)
    __call__ = raw
    def label(self, base="L"):
        self._lab += 1; return "%s_%d" % (base, self._lab)
    def ds(self, s, tok=None):
        self.raw(s); self.lds.append(tok); self.issued.add(tok)
    def vmem(self, s, tok=None):
        self.raw(s); self.vm.append(tok); self.issued.add(tok)
    def _need(self, fifo, toks, maxc):
        idx = -1
        for t in toks:
            assert t in self.issued, "waiting for token never issued: %r" % (t,)
            for i in range(len(fifo) - 1, -1, -1):
                if fifo[i] == t:
                    idx = max(idx, i); break
        if idx < 0: return None
        n = len(fifo) - 1 - idx
        del fifo[:idx + 1]
        if n > maxc:
            extra = n - maxc
            del fifo[:extra]
            n = maxc
        return n
    def wait(self, lds=(), vm=()):
        a = self._need(self.lds, list(lds), 15) if lds else None
        b = self._need(self.vm, list(vm), 63) if vm else None
        parts = []
        if b is not None: parts.append("vmcnt(%d)" % b)
        if a is not None: parts.append("lgkmcnt(%d)" % a)
        if parts: self.raw("s_waitcnt " + " ".join(parts))
        return bool(parts)
    def wait_all(self, lds=True, vm=True):
        parts = []
        if vm: parts.append("vmcnt(0)"); self.vm = []
        if lds: parts.append("lgkmcnt(0)"); self.lds = []
        self.raw("s_waitcnt " + " ".join(parts))
    def state(self): return (list(self.lds), list(self.vm), set(self.issued))
    def set_state(self, st): self.lds, self.vm, self.issued = list(st[0]), list(st[1]), set(st[2])
    def text(self): return "\n".join(self.lines) + "\n"
```

```python
import sys, os, struct
from sched import Emit

NAME = "recurrent_scan__sliding_local_dilated__glu_gated_reglu__prompt_kernel"

H_OFF    = 0x0000000
O_OFF    = 0x1400000
HALO_OFF = 0x1700000
PART_OFF = 0x1800000
FLAG_OFF = 0x3000000
DBG_OFF  = 0x3800000
STAMP_OFF= 0x3400000
WS_SIZE  = 0x10000000
F_HALO = FLAG_OFF
F_H    = FLAG_OFF + 0x10000
F_O    = FLAG_OFF + 0x20000
F_P    = FLAG_OFF + 0x30000
NONCE_OFF = FLAG_OFF + 0x40000
PUNIT = 10240

SLOT = 24576
R1 = 6
HB = 147456
STASH = 0
ARR = 6816
G2 = [77824, 114688, 40960]
OBUF = 151552
STATS = 161792
LDS_SIZE = 163840

S = dict(X=4, W=8, Q=12, H=16, WD=20, WS=24, A=28, B=32,
         wv=36, tq=37, fh=38, mt=39, j=40, par=41, nt=42, ks=43,
         m0w=44, m0q=45, soff=46, hoff=47, selo=48, sehi=49, ones=50,
         t0=51, t1=52, t2=53, t3=54, t4=55, t5=56, t6=57, t7=58, t8=59,
         ex=60, px=64, pq=66, po=68, pg=72, pu=74, pd=76, pout=78, pdbg=80, pws=82,
         nonce=84, stamp=86)
def s(n): return "s%d" % S[n]
def s2(n): return "s[%d:%d]" % (S[n], S[n] + 1)
def srd(n): return "s[%d:%d]" % (S[n], S[n] + 3)
def sr(n, k): return "s%d" % (S[n] + k)
def vr(a, n): return "v[%d:%d]" % (a, a + n - 1)
def fbits(x): return struct.unpack("<I", struct.pack("<f", x))[0]

V_RD = 3
V_DMA = 9
V_H = 12
V_R = 14
V_X = 16
V_ACC = 160
V_FR = 224
NFR = 6
V_HP = 248
V_QRD = 176
V_QA = 160
def X(a, ks): return V_X + 4 * (18 * a + ks)

class Opt:
    stamps = False
    stamp_tags = ()
    dump = None
    hflags = "sc1"
    D = 4
    dmagap = 3
    prefetch = True
    jit = True
    att_first = 2
    att_chunks = 4

class Gen:
    def __init__(self, opt):
        self.o = opt
        self.e = Emit()
        self.stamp_idx = {}
        self.role = "C"
    def stamp(self, tag):
        o = self.o
        if not o.stamps or tag not in o.stamp_tags: return
        e = self.e
        idx = o.stamp_tags.index(tag)
        k = S["stamp"] + 2 + idx
        assert k <= 101
        e("s_memtime s[%d:%d]" % (S["stamp"], S["stamp"] + 1))
        e.wait_all(lds=True, vm=False)
        e("s_mov_b32 s%d, s%d" % (k, S["stamp"]))
    def make_srd(self, name, ptr, off_sreg=None, size=None, size_sub=None):
        e = self.e; b = S[name]
        if off_sreg is None:
            e("s_mov_b32 s%d, %s" % (b, sr(ptr, 0))); e("s_mov_b32 s%d, %s" % (b + 1, sr(ptr, 1)))
        else:
            e("s_add_u32 s%d, %s, %s" % (b, sr(ptr, 0), off_sreg)); e("s_addc_u32 s%d, %s, 0" % (b + 1, sr(ptr, 1)))
        if size_sub is None: e("s_mov_b32 s%d, %d" % (b + 2, size))
        else: e("s_sub_u32 s%d, %d, %s" % (b + 2, size, size_sub))
        e("s_mov_b32 s%d, 0x20000" % (b + 3))
    def only(self, role, fn, track=True):
        e = self.e
        if self.role == role:
            fn(); return
        if self.role != "C": return
        lab = e.label("Lr")
        e("%s %s" % ("s_cbranch_vccz" if role == "D" else "s_cbranch_vccnz", lab))
        if role == "D" and track:
            fn()
        else:
            st = e.state(); fn(); iss = e.issued; e.set_state(st); e.issued = iss
        e("%s:" % lab)
    def lin(self, dst, terms, const=0):
        e = self.e
        first = True
        for name, coef in terms:
            src = s(name)
            if first:
                if coef == 1: e("s_mov_b32 %s, %s" % (dst, src))
                elif coef & (coef - 1) == 0: e("s_lshl_b32 %s, %s, %d" % (dst, src, coef.bit_length() - 1))
                else: e("s_mul_i32 %s, %s, %d" % (dst, src, coef))
                first = False
            else:
                tmp = s("t8")
                if coef == 1: e("s_add_u32 %s, %s, %s" % (dst, dst, src))
                else:
                    e("s_mul_i32 %s, %s, %d" % (tmp, src, coef))
                    e("s_add_u32 %s, %s, %s" % (dst, dst, tmp))
        if const: e("s_add_u32 %s, %s, %d" % (dst, dst, const))

    def flag_store(self, soff, va, tok="flag"):
        e = self.e
        e("v_mov_b32 v%d, %s" % (va, sr("nonce", 0)))
        e("v_mov_b32 v%d, %s" % (va + 1, sr("nonce", 1)))
        e("s_mov_b64 %s, exec" % s2("ex"))
        e("s_mov_b64 exec, 1")
        e.vmem("buffer_store_dwordx2 %s, off, %s, %s sc1" % (vr(va, 2), srd("WS"), soff), tok)
        e("s_mov_b64 exec, %s" % s2("ex"))
    def poll(self, mask, soff, va):
        e = self.e
        top = e.label("Lpoll"); done = e.label("Lpd")
        e("v_lshlrev_b32 v%d, 3, v0" % (va + 2))
        e("s_mov_b64 %s, exec" % s2("ex"))
        e("s_mov_b64 exec, %s" % (mask if isinstance(mask, str) else "%d" % mask))
        e("s_mov_b32 %s, 400000" % s("t7"))
        e("%s:" % top)
        e("buffer_load_dwordx2 %s, v%d, %s, %s offen sc1" % (vr(va, 2), va + 2, srd("WS"), soff))
        e("s_waitcnt vmcnt(0)")
        e("v_cmp_eq_u32 vcc, %s, v%d" % (sr("nonce", 0), va))
        e("v_cmp_eq_u32 s[62:63], %s, v%d" % (sr("nonce", 1), va + 1))
        e("s_nop 3")
        e("s_and_b64 vcc, vcc, s[62:63]")
        e("s_cmp_eq_u64 vcc, exec")
        e("s_cbranch_scc1 %s" % done)
        e("s_sub_u32 %s, %s, 1" % (s("t7"), s("t7")))
        e("s_cmp_eq_u32 %s, 0" % s("t7"))
        e("s_cbranch_scc1 %s" % done)
        e("s_branch %s" % top)
        e("%s:" % done)
        e("s_mov_b64 exec, %s" % s2("ex"))
        e.vm = []

    def prologue(self):
        e = self.e; o = self.o
        e("s_cmp_ge_u32 s2, 256")
        e("s_cbranch_scc1 L_exit")
        e("s_load_dwordx4 s[64:67], s[0:1], 0")
        e("s_load_dwordx2 s[68:69], s[0:1], 16")
        e("s_load_dwordx4 s[72:75], s[0:1], 32")
        e("s_load_dwordx4 s[76:79], s[0:1], 48")
        e("s_load_dwordx4 s[80:83], s[0:1], 64")
        e("s_getpc_b64 s[52:53]")
        e("L_pc:")
        e("v_lshlrev_b32 v1, 7, v0")
        e("v_min_u32 v1, (L_code_end-L_pc-4), v1")
        e.vmem("global_load_dword v255, v1, s[52:53]", "cpf")
        e("v_lshrrev_b32 v1, 6, v0")
        e("v_and_b32 v0, 63, v0")
        e("s_nop 0")
        e("v_readfirstlane_b32 %s, v1" % s("wv"))
        e("s_and_b32 %s, s2, 7" % s("t0"))
        e("s_lshr_b32 %s, %s, 1" % (s("ks"), s("t0")))
        e("s_and_b32 %s, %s, 1" % (s("t0"), s("t0")))
        e("s_lshr_b32 %s, s2, 3" % s("t3"))
        e("s_lshr_b32 %s, %s, 2" % (s("mt"), s("t3")))
        e("s_lshl_b32 %s, %s, 3" % (s("t0"), s("t0")))
        e("s_add_u32 %s, %s, %s" % (s("mt"), s("mt"), s("t0")))
        e("s_and_b32 %s, %s, 3" % (s("nt"), s("t3")))
        e("s_lshl_b32 %s, %s, 2" % (s("j"), s("ks")))
        e("s_add_u32 %s, %s, %s" % (s("j"), s("j"), s("nt")))
        e("s_and_b32 %s, %s, 1" % (s("par"), s("j")))
        e("s_and_b32 %s, %s, 3" % (s("tq"), s("wv")))
        e("s_lshr_b32 %s, %s, 2" % (s("fh"), s("wv")))
        e("s_mov_b32 %s, 0x3f80" % s("selo"))
        e("s_mov_b32 %s, 0x3f800000" % s("sehi"))
        e("s_mov_b32 %s, 0x3f803f80" % s("ones"))
        e("s_waitcnt lgkmcnt(0)")
        self.stamp("p0")
        e("s_mul_i32 %s, %s, 147456" % (s("t0"), s("mt")))
        self.make_srd("X", "px", s("t0"), 147456)
        self.lin(s("t0"), [("tq", 32), ("fh", 16)])
        e("v_lshrrev_b32 v1, 3, v0")
        e("v_add_u32 v1, %s, v1" % s("t0"))
        e("v_mul_u32_u24 v1, 1152, v1")
        e("v_lshrrev_b32 v2, 4, v0")
        e("v_and_b32 v3, 7, v0")
        e("v_xor_b32 v4, v3, v2")
        e("v_lshl_add_u32 v5, v4, 4, v1")
        e("v_xor_b32 v4, 4, v4")
        e("v_lshl_add_u32 v6, v4, 4, v1")
        e("v_add_u32 v6, %d, v6" % (8 * 1152))
        self.lin(s("t3"), [("tq", 36864), ("fh", 18432)])
        e("s_mov_b32 m0, %s" % s("t3"))
        for kk in range(9):
            e("s_movk_i32 %s, %d" % (s("soff"), 128 * kk))
            for blk in range(2):
                e.vmem("buffer_load_dwordx4 v%d, %s, %s offen lds" % (5 + blk, srd("X"), s("soff")), "xdma")
                e("s_add_u32 m0, m0, 1024")
                if blk == 0: e("s_nop 0")
        e("s_lshr_b32 %s, %s, 1" % (s("t0"), s("j")))
        e("s_mul_i32 %s, %s, 1152" % (s("t0"), s("t0")))
        self.make_srd("W", "pg", s("t0"), 576 * 9216, s("t0"))
        self.make_srd("A", "pu", s("t0"), 576 * 9216, s("t0"))
        e("s_mul_i32 %s, %s, 72" % (s("t0"), s("j")))
        e("s_lshl_b32 %s, %s, 3" % (s("t1"), s("par")))
        e("s_sub_u32 %s, %s, %s" % (s("t0"), s("t0"), s("t1")))
        self.make_srd("Q", "pq", s("t0"), 576 * 3456, s("t0"))
        self.lin(s("t0"), [("mt", 4 * 144 * 2048), ("tq", 144 * 2048), ("j", 9 * 2048)], H_OFF)
        self.make_srd("H", "pws", s("t0"), 9 * 2048)
        self.make_srd("WS", "pws", None, WS_SIZE)
        e("s_mov_b32 %s, %d" % (s("t6"), NONCE_OFF))
        e.vmem("buffer_load_dword v254, off, %s, %s sc1" % (srd("WS"), s("t6")), "nsrc")
        e("s_mul_i32 %s, %s, 3072" % (s("m0w"), s("tq")))
        e("s_mul_i32 %s, %s, 6144" % (s("m0q"), s("tq")))
        self.lin(s("t0"), [("fh", 2048), ("par", 2048)])
        e("s_lshl_b32 %s, %s, 10" % (s("t1"), s("fh")))
        e("s_add_u32 %s, %s, %s" % (s("t2"), s("t0"), s("t1")))
        e("v_lshlrev_b32 v1, 4, v0")
        e("v_add_u32 v%d, %s, v1" % (V_H, s("t2")))
        e("s_sub_u32 %s, %s, %s" % (s("t2"), s("t0"), s("t1")))
        e("s_add_u32 %s, %s, 1024" % (s("t2"), s("t2")))
        e("v_add_u32 v%d, %s, v1" % (V_H + 1, s("t2")))
        self.pat_full_rd()
        self.pat_full_dma()
        e("s_cmp_eq_u32 %s, 0" % s("fh"))
        e("s_cselect_b64 vcc, -1, 0")
        def s_addr():
            e("s_lshl_b32 %s, %s, 11" % (s("t0"), s("par")))
            e("v_lshlrev_b32 v1, 4, v0")
            e("v_add_u32 v%d, %s, v1" % (V_DMA, s("t0")))
            self.lin(s("t0"), [("tq", 2048)], HB)
            e("v_add_u32 v%d, %s, v1" % (V_DMA + 1, s("t0")))
        self.only("S", s_addr)
        T = V_FR
        e("v_and_b32 v1, 15, v0")
        e("v_lshrrev_b32 v2, 3, v1")
        e("v_lshlrev_b32 v2, 10, v2")
        e("v_and_b32 v%d, 7, v1" % (T + 4))
        e("v_lshl_add_u32 v2, v%d, 7, v2" % (T + 4))
        e("v_bfe_u32 v%d, v1, 1, 3" % (T + 4))
        e("v_lshrrev_b32 v%d, 4, v0" % (T + 5))
        e("v_xor_b32 v%d, v%d, v%d" % (T + 4, T + 4, T + 5))
        e("v_lshl_add_u32 v2, v%d, 4, v2" % (T + 4))
        e("s_mul_i32 %s, %s, 36864" % (s("t0"), s("tq")))
        e("s_mul_i32 %s, %s, 18432" % (s("t1"), s("fh")))
        e("s_add_u32 %s, %s, %s" % (s("t2"), s("t0"), s("t1")))
        e("v_add_u32 v%d, %s, v2" % (T + 0, s("t2")))
        e("v_xor_b32 v%d, 64, v%d" % (T + 1, T + 0))
        e("s_sub_u32 %s, %s, %s" % (s("t2"), s("t0"), s("t1")))
        e("s_add_u32 %s, %s, 18432" % (s("t2"), s("t2")))
        e("v_add_u32 v%d, %s, v2" % (T + 2, s("t2")))
        e("v_xor_b32 v%d, 64, v%d" % (T + 3, T + 2))
        e("s_lshl_b32 %s, %s, 5" % (s("t0"), s("tq")))
        e("s_lshl_b32 %s, %s, 4" % (s("t1"), s("fh")))
        e("s_add_u32 %s, %s, %s" % (s("t2"), s("t0"), s("t1")))
        e("v_add_u32 v%d, %s, v1" % (T + 6, s("t2")))
        e("v_lshlrev_b32 v%d, 3, v%d" % (T + 6, T + 6))
        e("s_sub_u32 %s, %s, %s" % (s("t2"), s("t0"), s("t1")))
        e("s_add_u32 %s, %s, 16" % (s("t2"), s("t2")))
        e("v_add_u32 v%d, %s, v1" % (T + 7, s("t2")))
        e("v_lshlrev_b32 v%d, 3, v%d" % (T + 7, T + 7))
        e("v_add_u32 v%d, %d, v%d" % (T + 6, STATS, T + 6))
        e("v_add_u32 v%d, %d, v%d" % (T + 7, STATS, T + 7))
        for r in range(4): e("v_mov_b32 v%d, %s" % (T + 8 + r, s("ones")))
        e.wait_all(lds=False, vm=True)
        self.nonce_publish()
        self.stamp("p1")
        for ks in range(18):
            e.ds("ds_read_b128 %s, v%d offset:%d" % (vr(X(0, ks), 4), T + (ks & 1), (ks >> 1) * 2048), ("x", 0, ks))
        A = V_ACC
        e("v_mov_b32 v%d, 0" % (A + 4)); e("v_mov_b32 v%d, 0" % (A + 5))
        for ks in range(18):
            e.wait(lds=[("x", 0, ks)])
            e("v_mfma_f32_16x16x32_bf16 %s, %s, %s, %s" % (vr(A, 4), vr(T + 8, 4), vr(X(0, ks), 4), "0" if ks == 0 else vr(A, 4)))
            for r in range(4):
                x = X(0, ks) + r
                e("v_dot2c_f32_bf16 v%d, v%d, v%d" % (A + 4 + (r & 1), x, x))
        e("s_nop 2")
        e("v_add_f32 v%d, v%d, v%d" % (A + 4, A + 4, A + 5))
        for swap in ("v_permlane32_swap_b32", "v_permlane16_swap_b32"):
            e("v_mov_b32 v%d, v%d" % (A + 5, A + 4))
            e("s_nop 1")
            e("%s v%d, v%d" % (swap, A + 4, A + 5))
            e("s_nop 1")
            e("v_add_f32 v%d, v%d, v%d" % (A + 4, A + 4, A + 5))
        e("s_mov_b32 %s, 0x3ae38e39" % s("t0"))
        e("v_mul_f32 v%d, %s, v%d" % (A, s("t0"), A))
        e("v_mul_f32 v%d, %s, v%d" % (A + 4, s("t0"), A + 4))
        e("v_fma_f32 v%d, -v%d, v%d, v%d" % (A + 4, A, A, A + 4))
        e("v_max_f32 v%d, 0, v%d" % (A + 4, A + 4))
        e("v_add_f32 v%d, 0x3727c5ac, v%d" % (A + 4, A + 4))
        e("v_rsq_f32 v%d, v%d" % (V_R, A + 4))
        e("v_sub_f32 v%d, 0, v%d" % (A + 6, A))
        e("v_mov_b32 v%d, v%d" % (A + 7, V_R))
        e("s_mov_b64 %s, exec" % s2("ex"))
        e("s_mov_b64 exec, 0xffff")
        e.ds("ds_write_b64 v%d, %s" % (T + 6, vr(A + 6, 2)), "stw")
        e("s_mov_b64 exec, %s" % s2("ex"))
        e.wait_all(lds=True, vm=False)
        e("s_barrier")
        self.stamp("p2")
        e.ds("ds_read_b64 %s, v%d" % (vr(A + 8, 2), T + 7), "sto")
        for ks in range(18):
            e.ds("ds_read_b128 %s, v%d offset:%d" % (vr(X(1, ks), 4), T + 2 + (ks & 1), (ks >> 1) * 2048), ("x", 1, ks))
        if not o.jit:
            for it in self.norm_items(0, range(18)): e(it)
        e.wait_all(lds=True, vm=False)
        e("v_mov_b32 v%d, v%d" % (V_R + 1, A + 9))
        e("s_barrier")
        self.stamp("p3")

    NM = (V_ACC + 32, V_ACC + 33)
    def norm_items(self, a, kss):
        L = []
        t = [V_HP + i for i in range(8)]
        nm = self.NM[a] if self.o.jit else (V_ACC + 6 if a == 0 else V_ACC + 8)
        for ks in kss:
            x = X(a, ks)
            for r in range(4):
                L.append("v_dot2_f32_bf16 v%d, v%d, %s, v%d" % (t[2 * r], x + r, s("selo"), nm))
                L.append("v_dot2_f32_bf16 v%d, v%d, %s, v%d" % (t[2 * r + 1], x + r, s("sehi"), nm))
            for r in range(4):
                L.append("v_cvt_pk_bf16_f32 v%d, v%d, v%d" % (x + r, t[2 * r], t[2 * r + 1]))
        return L

    def nonce_publish(self):
        e = self.e
        lab = e.label("Lnp")
        e("s_or_b32 %s, s2, %s" % (s("t0"), s("wv")))
        e("s_cmp_eq_u32 %s, 0" % s("t0"))
        e("s_cbranch_scc0 %s" % lab)
        e("v_readfirstlane_b32 %s, v254" % s("t0"))
        e("s_nop 3")
        e("s_add_u32 %s, %s, 1" % (s("t0"), s("t0")))
        e("s_mul_i32 %s, %s, 0x9E3779B1" % (s("t1"), s("t0")))
        e("s_not_b32 %s, %s" % (s("t2"), s("t1")))
        e("v_mov_b32 v254, %s" % s("t0"))
        e("v_mov_b32 v252, %s" % s("t1"))
        e("v_mov_b32 v253, %s" % s("t2"))
        e("v_mov_b32 v1, 0")
        e("s_mov_b64 %s, exec" % s2("ex"))
        e("s_mov_b64 exec, 1")
        e("buffer_store_dword v254, off, %s, %s sc1" % (srd("WS"), s("t6")))
        e("global_store_dwordx2 v1, v[252:253], %s sc1" % s2("pdbg"))
        e("s_mov_b64 exec, %s" % s2("ex"))
        e("s_waitcnt vmcnt(0)")
        e("%s:" % lab)
    def nonce_issue(self):
        e = self.e
        e("v_mov_b32 v1, 0")
        e.vmem("global_load_dwordx2 v[%d:%d], v1, %s sc1" % (self.NV, self.NV + 1, s2("pdbg")), "nonce")
    NV = V_ACC + 34
    def nonce_check(self):
        e = self.e
        ok = e.label("Lnok"); sp = e.label("Lnsp")
        e.wait(vm=["nonce"])
        self.only("S", lambda: e("s_waitcnt vmcnt(0)"))
        e("s_mov_b32 %s, 400000" % s("t7"))
        e("%s:" % sp)
        e("v_readfirstlane_b32 %s, v%d" % (sr("nonce", 0), self.NV))
        e("v_readfirstlane_b32 %s, v%d" % (sr("nonce", 1), self.NV + 1))
        e("s_nop 3")
        e("s_not_b32 %s, %s" % (s("t6"), sr("nonce", 0)))
        e("s_cmp_eq_u32 %s, %s" % (s("t6"), sr("nonce", 1)))
        e("s_cbranch_scc1 %s" % ok)
        e("s_sub_u32 %s, %s, 1" % (s("t7"), s("t7")))
        e("s_cmp_eq_u32 %s, 0" % s("t7"))
        e("s_cbranch_scc1 %s" % ok)
        e("v_mov_b32 v1, 0")
        e("global_load_dwordx2 v[%d:%d], v1, %s sc1" % (self.NV, self.NV + 1, s2("pdbg")))
        e("s_waitcnt vmcnt(0)")
        e("s_branch %s" % sp)
        e("%s:" % ok)

    def pat_full_dma(self):
        e = self.e
        e("s_mul_i32 %s, %s, 640" % (s("t3"), s("par")))
        for n in range(3):
            e("s_add_u32 %s, %s, %d" % (s("t0"), s("tq"), n))
            e("s_and_b32 %s, %s, 1" % (s("t0"), s("t0")))
            e("s_lshl_b32 %s, %s, 1" % (s("t0"), s("t0")))
            e("v_bfe_u32 v1, v0, 4, 1")
            e("v_or_b32 v1, %s, v1" % s("t0"))
            e("v_lshlrev_b32 v1, 1, v1")
            e("v_and_b32 v2, 7, v0")
            e("v_xor_b32 v1, v1, v2")
            e("v_lshlrev_b32 v1, 4, v1")
            self.lin(s("t0"), [("tq", 24)], 8 * n)
            e("v_lshrrev_b32 v2, 3, v0")
            e("v_add_u32 v2, %s, v2" % s("t0"))
            e("v_mul_u32_u24 v2, 9216, v2")
            e("v_add3_u32 v1, v1, v2, %s" % s("t3"))
            e("v_subrev_u32 v%d, %d, v1" % (V_DMA + n, 1024 * n))
    def pat_full_rd(self):
        e = self.e
        T = V_ACC + 16
        e("v_lshrrev_b32 v%d, 4, v0" % T)
        e("v_bfe_u32 v%d, v0, 2, 2" % (T + 1))
        e("v_lshl_add_u32 v1, v%d, 3, v%d" % (T, T + 1))
        e("v_lshlrev_b32 v1, 7, v1")
        e("v_and_b32 v2, 3, v0")
        e("v_lshl_add_u32 v1, v2, 3, v1")
        e("v_lshrrev_b32 v%d, 1, v%d" % (T + 1, T + 1))
        e("v_and_b32 v%d, 1, v%d" % (T, T))
        e("v_lshl_or_b32 v%d, v%d, 1, v%d" % (T, T, T + 1))
        for tl in range(2):
            self.lin(s("t0"), [("fh", 2)], tl)
            e("v_xor_b32 v2, %s, v%d" % (s("t0"), T))
            e("v_lshl_add_u32 v%d, v2, 5, v1" % (V_RD + 3 * tl))
            e("v_add_u32 v%d, 49152, v%d" % (V_RD + 3 * tl + 1, V_RD + 3 * tl))
            e("v_add_u32 v%d, 98304, v%d" % (V_RD + 3 * tl + 2, V_RD + 3 * tl))
    def pat_half_dma_list(self):
        L = []; a = L.append
        a("s_lshl_b32 %s, %s, 6" % (s("t3"), s("par")))
        a("s_add_u32 %s, %s, 512" % (s("t3"), s("t3")))
        a("v_bfe_u32 v1, v0, 5, 1")
        a("v_lshlrev_b32 v1, 1, v1")
        a("v_and_b32 v2, 3, v0")
        a("v_xor_b32 v1, v1, v2")
        a("v_lshlrev_b32 v1, 4, v1")
        a("s_mul_i32 %s, %s, 48" % (s("t0"), s("tq")))
        a("v_lshrrev_b32 v2, 2, v0")
        a("v_add_u32 v2, %s, v2" % s("t0"))
        a("v_mul_u32_u24 v2, 9216, v2")
        a("v_add3_u32 v1, v1, v2, %s" % s("t3"))
        for n in range(3): a("v_add_u32 v%d, %d, v1" % (V_DMA + n, (16 * 9216 - 1024) * n))
        return L
    def pat_half_rd_list(self):
        L = []; a = L.append
        a("v_lshrrev_b32 v1, 4, v0")
        a("v_bfe_u32 v2, v0, 2, 2")
        a("v_lshl_add_u32 v1, v1, 3, v2")
        a("v_lshlrev_b32 v1, 6, v1")
        a("v_and_b32 v2, 3, v0")
        a("v_lshl_add_u32 v1, v2, 3, v1")
        a("v_bfe_u32 v2, v0, 4, 1")
        a("v_xor_b32 v2, %s, v2" % s("fh"))
        a("v_lshl_add_u32 v%d, v2, 5, v1" % V_RD)
        a("v_add_u32 v%d, 49152, v%d" % (V_RD + 1, V_RD))
        return L
    def pat_qkv_dma_list(self):
        L = []; a = L.append
        for x in range(2):
            a("s_add_u32 %s, %s, %d" % (s("t0"), s("tq"), x))
            a("s_and_b32 %s, %s, 1" % (s("t0"), s("t0")))
            a("s_lshl_b32 %s, %s, 2" % (s("t0"), s("t0")))
            a("v_lshrrev_b32 v1, 4, v0")
            a("v_or_b32 v2, %s, v1" % s("t0"))
            a("v_lshlrev_b32 v2, 1, v2")
            a("v_sub_u32 v2, v0, v2")
            a("v_and_b32 v2, 15, v2")
            a("v_min_u32 v2, 14, v2")
            a("s_mul_i32 %s, %s, 24" % (s("t0"), s("tq")))
            a("v_add_u32 v1, %s, v1" % s("t0"))
            a("v_mul_u32_u24 v1, 3456, v1")
            a("v_lshl_add_u32 v1, v2, 4, v1")
            a("v_mul_u32_u24 v2, 13, v2")
            a("v_lshrrev_b32 v2, 6, v2")
            a("v_mul_u32_u24 v2, %d, v2" % (1152 - 80))
            a("v_add_u32 v%d, v1, v2" % (V_DMA + x))
        return L
    def pat_qkv_rd_list(self, tiles):
        L = []; a = L.append
        for tl in tiles:
            a("s_lshl_b32 %s, %s, 4" % (s("t0"), s("fh")))
            a("s_add_u32 %s, %s, %d" % (s("t0"), s("t0"), 4 * tl))
            a("v_and_b32 v1, 3, v0")
            a("v_add_u32 v1, %s, v1" % s("t0"))
            a("v_min_u32 v1, 26, v1")
            a("v_mul_u32_u24 v2, 57, v1")
            a("v_lshrrev_b32 v2, 9, v2")
            a("v_lshlrev_b32 v1, 3, v1")
            a("v_lshl_add_u32 v1, v2, 3, v1")
            a("s_lshl_b32 %s, %s, 3" % (s("t1"), s("par")))
            a("v_add_u32 v1, %s, v1" % s("t1"))
            a("v_bfe_u32 v2, v0, 4, 1")
            a("v_lshlrev_b32 v2, 2, v2")
            d = V_QRD + 3 * tl
            a("v_bfe_u32 v%d, v0, 2, 2" % d)
            a("v_or_b32 v2, v2, v%d" % d)
            a("v_lshl_add_u32 v1, v2, 5, v1")
            a("v_and_b32 v1, 255, v1")
            a("v_lshrrev_b32 v2, 4, v0")
            a("v_lshl_add_u32 v2, v2, 3, v%d" % d)
            a("v_lshl_add_u32 v%d, v2, 8, v1" % d)
            a("v_add_u32 v%d, 49152, v%d" % (d + 1, d))
            a("v_add_u32 v%d, 98304, v%d" % (d + 2, d))
        return L
    def pat_stash_list(self, role):
        L = []; a = L.append
        fh = 0 if role == "D" else 1
        ntl = 4 if role == "D" else 3
        T = V_QA + 10
        a("v_and_b32 v1, 15, v0")
        for aa in range(2):
            m = aa ^ fh
            a("s_lshl_b32 %s, %s, 5" % (s("t0"), s("tq")))
            a("s_add_u32 %s, %s, %d" % (s("t0"), s("t0"), 14 + 16 * m))
            a("v_add_u32 v2, %s, v1" % s("t0"))
            a("v_mul_u32_u24 v%d, 48, v2" % (V_QA + 8 + aa))
        a("v_bfe_u32 v%d, v0, 4, 1" % T)
        a("v_lshlrev_b32 v%d, 4, v%d" % (T, T))
        a("v_lshrrev_b32 v%d, 5, v0" % (T + 1))
        def off(tl, g, dw):
            p = 4 * (4 * fh + tl) + g
            if p > 26: return 40
            kind, pi = divmod(p, 9)
            phi = 4 * pi + 2 * dw
            head = 1 if phi >= 18 else 0
            return (2 * kind + head) * ARR + 2 * (phi - 18 * head)
        for tl in range(ntl):
            for dw in range(2):
                c = [off(tl, g, dw) for g in range(4)]
                lo, hi = c[0] | (c[1] << 16), c[2] | (c[3] << 16)
                a("s_mov_b32 %s, %d" % (s("t0"), (hi - lo) & 0xffffffff))
                a("v_mul_lo_u32 v1, v%d, %s" % (T + 1, s("t0")))
                a("v_add_u32 v1, %d, v1" % lo)
                a("v_bfe_u32 v%d, v1, v%d, 16" % (V_QA + 2 * tl + dw, T))
        return L
    def pat_wd_dma_list(self, base):
        L = []; a = L.append
        for n in range(9):
            a("v_add_u32 v1, %d, v0" % (64 * n))
            a("v_mul_u32_u24 v2, 3641, v1")
            a("v_lshrrev_b32 v2, 16, v2")
            a("v_mul_u32_u24 v%d, 18, v2" % (base + n))
            a("v_sub_u32 v1, v1, v%d" % (base + n))
            a("v_mul_u32_u24 v2, 1152, v2")
            a("v_lshl_add_u32 v1, v1, 4, v2")
            a("v_subrev_u32 v%d, %d, v1" % (base + n, 1024 * (n % 4)))
        return L
    def pat_wo_tail_dma(self, base):
        e = self.e
        for n in range(9):
            e("v_add_u32 v1, %d, v0" % (64 * n))
            e("v_mul_u32_u24 v2, 3641, v1")
            e("v_lshrrev_b32 v2, 16, v2")
            e("v_mul_u32_u24 v%d, 18, v2" % (base + n))
            e("v_sub_u32 v1, v1, v%d" % (base + n))
            e("v_lshrrev_b32 v%d, 2, v2" % (base + n))
            e("v_mul_u32_u24 v%d, 36, v%d" % (base + n, base + n))
            e("v_and_b32 v2, 3, v2")
            e("v_add3_u32 v2, v2, v%d, 32" % (base + n))
            e("v_mul_u32_u24 v2, 1152, v2")
            e("v_lshl_add_u32 v1, v1, 4, v2")
            e("v_subrev_u32 v%d, %d, v1" % (base + n, 1024 * (n % 4)))
    def dma9_list(self, vbase, srdname, soff, ldsbase_sreg, ldsconst, tok, flags=""):
        L = []
        for n in range(9):
            if n % 4 == 0:
                L.append(("s", "s_add_u32 m0, %s, %d\ns_nop 0" % (ldsbase_sreg, ldsconst + 1024 * n)))
            L.append(("v", "buffer_load_dwordx4 v%d, %s, %s offen offset:%d %s lds" % (vbase + n, srd(srdname), soff, 1024 * (n % 4), flags), tok))
        return L
    def run_item(self, it):
        e = self.e
        if it[0] == "s": e(it[1])
        elif it[0] == "v": e.vmem(it[1], it[2])
        elif it[0] == "d": e.ds(it[1], it[2])
        else: it[1]()

    def s1_tables(self):
        stages = []
        for sb in range(4):
            for st in range(6): stages.append(("full", sb, st))
        for st in range(3): stages.append(("half", 4, st))
        for st in range(6): stages.append(("qkv", 5, st))
        self.stages = stages
    @staticmethod
    def accf(set_, tl, mat, a): return V_ACC + 32 * set_ + ((tl * 2 + mat) * 2 + a) * 4
    @staticmethod
    def acch(mat, a): return V_ACC + (mat * 2 + a) * 4
    @staticmethod
    def accq(tl, a): return V_ACC + 32 + (tl * 2 + a) * 4
    def stage_steps(self, si, role):
        kind, sb, st = self.stages[si]
        slot = si % R1; grp, rem = divmod(slot, 2)
        fl = []
        if kind == "full":
            for tl in range(2):
                for mat in range(2):
                    for ks in range(3):
                        base = rem * SLOT + mat * 12288 + 32 * ks * 128
                        fl.append(([(V_RD + 3 * tl + grp, base + 4 * rr * 128) for rr in range(2)],
                                   [(self.accf(sb & 1, tl, mat, a), X(a, 3 * st + ks), st == 0 and ks == 0) for a in range(2)]))
        elif kind == "half":
            for mat in range(2):
                for ks in range(6):
                    base = rem * SLOT + mat * 12288 + 32 * ks * 64
                    fl.append(([(V_RD + grp, base + 4 * rr * 64) for rr in range(2)],
                               [(self.acch(mat, a), X(a, 6 * st + ks), st == 0 and ks == 0) for a in range(2)]))
        else:
            for tl in range(4 if role != "S" else 3):
                for ks in range(3):
                    base = rem * SLOT + 32 * ks * 256
                    fl.append(([(V_QRD + 3 * tl + grp, base + 4 * rr * 256) for rr in range(2)],
                               [(self.accq(tl, a), X(a, 3 * st + ks), st == 0 and ks == 0) for a in range(2)]))
        return [dict(si=si, first=(i == 0), last=(i == len(fl) - 1), rd=rd, mf=mf) for i, (rd, mf) in enumerate(fl)]
    def dma_groups(self, si):
        e = self.e
        if si >= len(self.stages): return []
        kind, sb, st = self.stages[si]; slot = si % R1
        G = []
        if kind in ("full", "half"):
            so = st * 96 * 9216 + 128 * sb if kind == "full" else st * 192 * 9216
            for mat in range(2):
                def grp(mat=mat):
                    e("s_add_u32 m0, %s, %d" % (s("m0w"), slot * SLOT + 12288 * mat))
                    e("s_mov_b32 %s, %d" % (s("soff"), so))
                    for n in range(3):
                        e.vmem("buffer_load_dwordx4 v%d, %s, %s offen offset:%d lds" % (V_DMA + n, srd("W" if mat == 0 else "A"), s("soff"), 1024 * n), ("dma", si))
                G.append(grp)
        else:
            for h in range(2):
                def grp(h=h):
                    ns = range(0, 4) if h == 0 else range(4, 6)
                    e("s_add_u32 m0, %s, %d" % (s("m0q"), slot * SLOT + 4096 * h))
                    for n in ns:
                        e("s_mov_b32 %s, %d" % (s("soff"), st * 96 * 3456 + 13824 * n - 1024 * (n % 4)))
                        e.vmem("buffer_load_dwordx4 v%d, %s, %s offen offset:%d lds" % (V_DMA + ((n >> 1) & 1), srd("Q"), s("soff"), 1024 * (n % 4)), ("dma", si))
                G.append(grp)
        return G

    def epi_full_items(self, sb):
        e = self.e; L = []; set_ = sb & 1
        for a in range(2):
            h = V_HP + 4 * a
            for tt in range(2):
                g = self.accf(set_, tt, 0, a); u = self.accf(set_, tt, 1, a)
                for jx in range(4): L.append(("s", "v_max_f32 v%d, 0, v%d" % (g + jx, g + jx)))
                for jx in range(4): L.append(("s", "v_mul_f32 v%d, v%d, v%d" % (g + jx, g + jx, u + jx)))
                for jx in range(2): L.append(("s", "v_cvt_pk_bf16_f32 v%d, v%d, v%d" % (h + 2 * tt + jx, g + 2 * jx, g + 2 * jx + 1)))
        def dpart():
            self.lin(s("t4"), [("tq", 2048)], HB)
            e("v_lshlrev_b32 v1, 4, v0")
            e("v_add_u32 v1, %s, v1" % s("t4"))
            for a in range(2): e("ds_write_b128 v1, %s offset:%d" % (vr(V_HP + 4 * a, 4), 1024 * a))
        def spart():
            e("s_mov_b32 %s, %d" % (s("hoff"), 4096 * sb))
            for a in range(2): e("buffer_store_dwordx4 %s, v%d, %s, %s offen %s" % (vr(V_HP + 4 * a, 4), V_H + a, srd("H"), s("hoff"), self.o.hflags))
        L.append(("f", lambda: self.only("D", dpart, track=False)))
        L.append(("f", lambda: self.only("S", spart)))
        return L
    def handoff_read(self):
        e = self.e
        def f():
            for a in range(2): e("ds_read_b128 %s, v%d offset:%d" % (vr(V_HP + 4 * a, 4), V_DMA + 1, 1024 * a))
        self.only("S", f)
    def handoff_store(self, sb):
        e = self.e
        def f():
            e("s_mov_b32 %s, %d" % (s("hoff"), 4096 * sb))
            for a in range(2): e("buffer_store_dwordx4 %s, v%d, %s, %s offen offset:%d %s" % (vr(V_HP + 4 * a, 4), V_DMA, srd("H"), s("hoff"), 1024 * a, self.o.hflags))
        self.only("S", f)
    def epi_half_items(self, role):
        e = self.e; L = []
        for a in range(2):
            g = self.acch(0, a); u = self.acch(1, a)
            m = a if role == "D" else 1 - a
            h = V_HP + 4 * m + (0 if role == "D" else 2)
            for jx in range(4): L.append(("s", "v_max_f32 v%d, 0, v%d" % (g + jx, g + jx)))
            for jx in range(4): L.append(("s", "v_mul_f32 v%d, v%d, v%d" % (g + jx, g + jx, u + jx)))
            for jx in range(2): L.append(("s", "v_cvt_pk_bf16_f32 v%d, v%d, v%d" % (h + jx, g + 2 * jx, g + 2 * jx + 1)))
        if role == "D":
            def f():
                self.lin(s("t4"), [("tq", 2048)], HB)
                e("v_lshlrev_b32 v1, 4, v0")
                e("v_add_u32 v1, %s, v1" % s("t4"))
                for m in range(2): e("ds_write_b64 v1, %s offset:%d" % (vr(V_HP + 4 * m, 2), 1024 * m))
            L.append(("f", f))
        return L
    def prefetch_items(self, which):
        e = self.e; L = []
        if not self.o.prefetch: return L
        def f():
            e("s_and_b32 %s, %s, 7" % (s("t4"), s("mt")))
            e("s_lshl_b32 %s, %s, 2" % (s("t4"), s("t4")))
            e("s_add_u32 %s, %s, %s" % (s("t4"), s("t4"), s("nt")))
            if which == "wd":
                nl, size = 324, 4608 * 1152
                e("s_mul_i32 %s, %s, %d" % (s("t4"), s("t4"), nl * 128))
                e("s_mul_i32 %s, %s, %d" % (s("t5"), s("ks"), 1152 * 1152))
                e("s_add_u32 %s, %s, %s" % (s("t4"), s("t4"), s("t5")))
                self.make_srd("B", "pd", None, size)
                its = 2
            else:
                nl, size = 162, 576 * 1152
                e("s_mul_i32 %s, %s, %d" % (s("t4"), s("t4"), nl * 128))
                self.make_srd("B", "po", None, size)
                its = 1
            for i in range(its):
                e("s_lshl_b32 %s, %s, 6" % (s("t5"), s("tq")))
                e("v_add_u32 v1, %s, v0" % s("t5"))
                if i: e("v_add_u32 v1, 256, v1")
                e("v_min_u32 v1, %d, v1" % (nl - 1))
                e("v_lshlrev_b32 v1, 7, v1")
                e("buffer_load_dword v%d, v1, %s, %s offen" % (self.PFD, srd("B"), s("t4")))
        L.append(("f", f))
        return L
    PFD = 11

    def run_steps(self, steps, n0, n1, hooks, st):
        e = self.e; o = self.o; D = o.D
        N = len(steps)
        frag = lambda n: vr(V_FR + 4 * (n % NFR), 4)
        fragh = lambda n, rr: vr(V_FR + 4 * (n % NFR) + 2 * rr, 2)
        def fill():
            st["gap"] += 1
            if st["dmaq"] and st["dmaq"][0][0] <= st["gap"]:
                g = st["dmaq"].pop(0)[1]; self.only("D", g); return
            k = st.get("rate", 1)
            for _ in range(k):
                if st["misc"]: self.run_item(st["misc"].pop(0))
        def flush_dma():
            while st["dmaq"]: self.only("D", st["dmaq"].pop(0)[1])
        def flush_misc():
            while st["misc"]: self.run_item(st["misc"].pop(0))
        st["flush_misc"] = flush_misc
        for n in range(n0, n1):
            rd = n < N
            if rd:
                stp = steps[n]; si = stp["si"]
                if stp["first"]:
                    flush_dma()
                    hooks("pre", si, st)
                    if self.role != "S": e.wait(vm=[("dma", si)])
                    e("s_barrier")
                    self.stamp("s%d" % si)
                    groups = self.dma_groups(si + R1 - 2) if self.role != "S" else []
                    hooks("post", si, st)
                    for i, g in enumerate(groups): st["dmaq"].append((st["gap"] + 2 + 9 * i, g))
            mf = n >= D
            if mf:
                k = n - D; sk = steps[k]
                if k % 2 == 0: e.wait(lds=[("fr", min(k + 1, N - 1))])
                def mfma(i):
                    a_, b_, first = sk["mf"][i]
                    e("v_mfma_f32_16x16x32_bf16 %s, %s, %s, %s" % (vr(a_, 4), frag(k), vr(b_, 4), "0" if first else vr(a_, 4)))
                mfma(0)
            if rd: e.ds("ds_read_b64_tr_b16 %s, v%d offset:%d" % (fragh(n, 0), stp["rd"][0][0], stp["rd"][0][1]), ("fr", n))
            fill()
            if mf: mfma(1)
            if rd: e.ds("ds_read_b64_tr_b16 %s, v%d offset:%d" % (fragh(n, 1), stp["rd"][1][0], stp["rd"][1][1]), ("fr", n))
            fill()
            if mf and sk["last"]: hooks("done", sk["si"], st, n)
            while st["pend"] and st["pend"][0][0] <= n:
                it = st["pend"].pop(0)[1]
                if callable(it): it()
                else: st["misc"].extend(it)
        if n1 == N + D:
            flush_dma(); flush_misc()
            assert not st["pend"]

    def stage1_common(self):
        e = self.e; o = self.o
        self.s1_tables()
        stages = self.stages
        self.steps_c = [x for si in range(27) for x in self.stage_steps(si, "C")]
        st = dict(gap=0, dmaq=[], misc=[], pend=[])
        self.st = st
        for si in range(R1 - 2):
            for g in self.dma_groups(si): self.only("D", g)
        if o.jit:
            e("v_mov_b32 v%d, v%d" % (self.NM[0], V_ACC + 6))
            e("v_mov_b32 v%d, v%d" % (self.NM[1], V_ACC + 8))
            for a in range(2):
                for it in self.norm_items(a, range(6)): e(it)
        else:
            for it in self.norm_items(1, range(18)): e(it)
        self.stamp("p4")
        e(".p2align 3")
        def hooks(kind, si, st, n=None):
            k, sb, sti = stages[si]
            if kind == "pre":
                if si == 5: st["flush_misc"](); self.nonce_check()
                if o.jit and si in (2, 3, 4, 5): st["flush_misc"]()
                if (k, sti) in (("half", 0), ("qkv", 0)): st["flush_misc"]()
                if (k == "full" and sti == 3 and sb >= 1) or (k, sti) == ("half", 2):
                    st["flush_misc"](); e.wait_all(lds=True, vm=False)
            if kind == "post":
                if si == 1: self.nonce_issue()
                if o.jit and si < 4:
                    st["rate"] = 3
                    for a in range(2): st["misc"].extend(("s", x) for x in self.norm_items(a, range(3 * si + 6, 3 * si + 9)))
                if si == 4: st["rate"] = 1
                if (k == "full" and sti == 3 and sb >= 1) :
                    self.handoff_read(); st["pend"].append((self.cur_first[si] + o.D + 3, lambda sb=sb: self.handoff_store(sb - 1)))
                if (k, sti) == ("half", 2):
                    self.handoff_read(); st["pend"].append((self.cur_first[si] + o.D + 3, lambda: self.handoff_store(3)))
                if si == 20: self.only("D", lambda: [e(x) for x in self.pat_half_dma_list()], track=False)
                if si == 23: self.only("D", lambda: [e(x) for x in self.pat_qkv_dma_list()], track=False)
                if si == 23: st["misc"].extend([("f", lambda: self.only("S", self.prefetch_items("wd")[0][1]))] if o.prefetch else [])
                if (k, sti) == ("half", 0):
                    for x in self.pat_half_rd_list(): e(x)
                if si == 26: st["misc"].extend(("s", x) for x in self.pat_qkv_rd_list(range(4)))
            if kind == "done":
                if k == "full" and sti == 5: st["pend"].append((n + 3, self.epi_full_items(sb)))
        self.cur_first = {}
        for n, stp in enumerate(self.steps_c):
            if stp["first"]: self.cur_first[stp["si"]] = n
        self.hooks_c = hooks
        self.n_fork = len(self.steps_c)
        self.run_steps(self.steps_c + [None] * 0 + self.stage_steps(27, "D"), 0, self.n_fork, hooks, st)

    def stage1_role(self, role):
        e = self.e; o = self.o
        self.role = role
        steps = list(self.steps_c)
        for si in range(27, 33): steps += self.stage_steps(si, role)
        first = {}
        for n, stp in enumerate(steps):
            if stp["first"]: first[stp["si"]] = n
        st = dict(gap=self.st["gap"], dmaq=list(self.st["dmaq"]), misc=list(self.st["misc"]), pend=list(self.st["pend"]), rate=1)
        def hooks(kind, si, st, n=None):
            if kind == "pre":
                if si == 27: st["flush_misc"]()
                if si == 29: st["flush_misc"](); e.wait_all(lds=True, vm=False)
                if si == 30 and role == "S":
                    st["flush_misc"]()
                    e("s_waitcnt vmcnt(0)"); e.vm = []
                if si == 32: st["flush_misc"]()
            if kind == "post":
                if si == 29 and role == "S":
                    for m in range(2): e.ds("ds_read_b64 %s, v%d offset:%d" % (vr(V_HP + 4 * m, 2), V_DMA + 1, 1024 * m), ("hbh", m))
                    def fin():
                        e.wait(lds=[("hbh", 0), ("hbh", 1)])
                        e("s_lshl_b32 %s, %s, 14" % (s("t4"), s("par")))
                        e("s_sub_u32 %s, 16384, %s" % (s("t4"), s("t4")))
                        e("v_lshlrev_b32 v%d, 4, v0" % (V_DMA + 1))
                        for m in range(2):
                            e("buffer_store_dwordx4 %s, v%d, %s, %s offen offset:%d %s" % (vr(V_HP + 4 * m, 4), V_DMA + 1, srd("H"), s("t4"), 1024 * m, o.hflags))
                    st["pend"].append((first[si] + 2, fin))
                if si == 29: st["misc"].extend(("s", x) for x in self.pat_stash_list(role))
                if si == 30 and role == "S":
                    self.h_flag()
                    st["misc"].extend(("s", x) for x in self.pat_wd_dma_list(self.L_DMA))
                    st["misc"].append(("f", self.s2_wd_srd))
                    st["misc"].extend(self.wd_items(0))
                    st["rate"] = 3
                if si == 31 and role == "S":
                    st["misc"].extend(self.wd_items(1))
                    if o.prefetch:
                        self.PFD = 255
                        st["misc"].extend(self.prefetch_items("wo"))
            if kind == "done":
                k, sb, sti = self.stages[si]
                if (k, sti) == ("half", 2): st["pend"].append((n + 3, self.epi_half_items(role)))
        self.run_steps(steps, self.n_fork, len(steps) + o.D, hooks, st)
        e.wait_all(lds=True, vm=False)
        e("s_barrier")
        self.stamp("e1")

    def h_flag(self):
        e = self.e
        lab = e.label("Lhf")
        e("s_cmp_eq_u32 %s, 0" % s("tq"))
        e("s_cbranch_scc0 %s" % lab)
        self.lin(s("t4"), [("mt", 512), ("ks", 128), ("nt", 8)], F_H)
        st = e.state()
        self.flag_store(s("t4"), V_HP)
        e.set_state(st)
        e("%s:" % lab)

    def stash_write(self, role):
        e = self.e
        ntl = 4 if role == "D" else 3
        for tl in range(ntl):
            for a in range(2):
                ac = self.accq(tl, a)
                for x in range(4): e("v_mul_f32 v%d, v%d, v%d" % (ac + x, V_R + a, ac + x))
                for dw in range(2):
                    e("v_cvt_pk_bf16_f32 v%d, v%d, v%d" % (ac + 2 * dw, ac + 2 * dw, ac + 2 * dw + 1))
                    e("v_add_u32 v%d, v%d, v%d" % (ac + 2 * dw + 1, V_QA + 2 * tl + dw, V_QA + 8 + a))
                for dw in range(2):
                    e.ds("ds_write_b32 v%d, v%d offset:%d" % (ac + 2 * dw + 1, ac + 2 * dw, STASH), "stash")

    C_RD = 3; C_HV = 6; C_ACC = 16; C_H = 88; C_FR = 168; C_NFR = 6; C_SACC = 232
    L_DMA = 3
    def s2_wd_srd(self):
        e = self.e
        self.lin(s("t4"), [("ks", 36 * 32 * 1152), ("tq", 32 * 1152), ("nt", 288)])
        self.make_srd("WD", "pd", s("t4"), 4608 * 1152, s("t4"))
        e("s_mul_i32 %s, %s, 9216" % (s("m0q"), s("tq")))
    def wd_items(self, u):
        L = [("s", "s_mov_b32 %s, %d" % (s("soff"), u * 4 * 32 * 1152))]
        return L + self.dma9_list(self.L_DMA, "WD", s("soff"), s("m0q"), G2[u % 3], ("wd", u))

    def pat_s2_rd(self, base):
        e = self.e
        e("v_lshrrev_b32 v1, 4, v0")
        e("v_bfe_u32 v2, v0, 2, 2")
        e("v_lshl_add_u32 v1, v1, 2, v2")
        e("v_mul_u32_u24 v1, 288, v1")
        e("v_and_b32 v2, 3, v0")
        e("v_lshl_add_u32 v1, v2, 3, v1")
        for b in range(3): e("v_add_u32 v%d, %d, v1" % (base + b, G2[b]))

    def stage2_compute(self):
        e = self.e; o = self.o
        RD, HV, ACC, H, FR, NFR = self.C_RD, self.C_HV, self.C_ACC, self.C_H, self.C_FR, self.C_NFR
        self.lin(s("t0"), [("mt", 4 * 144 * 2048), ("tq", 144 * 2048), ("ks", 36 * 2048)], H_OFF)
        self.make_srd("A", "pws", s("t0"), 36 * 2048)
        self.lin(s("t4"), [("mt", 512), ("ks", 128)], F_H)
        self.poll(15, s("t4"), 8)
        self.stamp("hpoll")
        e("v_lshlrev_b32 v%d, 4, v0" % HV)
        PD = 9
        def hload(kb):
            L = []
            if kb >= 36: return L
            L.append(("s", "s_mov_b32 %s, %d" % (s("soff"), (kb >> 1) * 4096)))
            for m in range(2):
                L.append(("v", "buffer_load_dwordx4 %s, v%d, %s, %s offen offset:%d sc1" % (vr(H + 8 * (kb % 10) + 4 * m, 4), HV, srd("A"), s("soff"), (kb & 1) * 2048 + 1024 * m), ("h", kb)))
            return L
        for kb in range(PD):
            for it in hload(kb): self.run_item(it)
        self.stash_write("D")
        if o.dump == "stash": self.dump_lds(STASH, 40960)
        self.pat_s2_rd(RD)
        self.lin(s("t0"), [("mt", 64 * PUNIT), ("nt", 16 * PUNIT), ("ks", 4 * PUNIT), ("tq", PUNIT)], PART_OFF)
        self.make_srd("B", "pws", s("t0"), PUNIT)
        e.wait_all(lds=True, vm=False)
        acc = lambda m, t: ACC + 4 * (9 * m + t)
        steps = [(kb, t) for kb in range(36) for t in range(9)]
        N = len(steps); D = 4
        frag = lambda n: vr(FR + 4 * (n % NFR), 4)
        fragh = lambda n, rr: vr(FR + 4 * (n % NFR) + 2 * rr, 2)
        fill = []
        for n in range(N + D):
            rd = n < N
            if rd:
                kb, t = steps[n]
                u, kl = divmod(kb, 4)
                if kl == 0 and t == 0:
                    e("s_barrier")
                    self.stamp("g%d" % u)
                base = kl * 9216 + 32 * t
            mf = n >= D
            if mf:
                k = n - D; kb2, t2 = steps[k]
                if t2 == 0:
                    e.wait(vm=[("h", kb2)])
                    fill.extend(hload(kb2 + PD))
                if k % 2 == 0: e.wait(lds=[("fr", min(k + 1, N - 1))])
                def mfma(m):
                    a_ = acc(m, t2)
                    e("v_mfma_f32_16x16x32_bf16 %s, %s, %s, %s" % (vr(a_, 4), frag(k), vr(H + 8 * (kb2 % 10) + 4 * m, 4), "0" if kb2 == 0 else vr(a_, 4)))
                mfma(0)
            if rd: e.ds("ds_read_b64_tr_b16 %s, v%d offset:%d" % (fragh(n, 0), RD + u % 3, base), ("fr", n))
            if mf: mfma(1)
            if rd: e.ds("ds_read_b64_tr_b16 %s, v%d offset:%d" % (fragh(n, 1), RD + u % 3, base + 16 * 288), ("fr", n))
            if fill: self.run_item(fill.pop(0))
        e.wait_all(lds=True, vm=False)
        e("s_barrier")
        self.stamp("tb1")
        e("s_nop 4")
        PK = 88
        units = [(0, 1), (2, 2), (3, 4), (5, 6), (7, 8)]
        for m in range(2):
            for ui, (ta, tb) in enumerate(units):
                d = PK + 4 * (5 * m + ui)
                for x, t in enumerate((ta, tb)):
                    a_ = acc(m, t)
                    e("v_cvt_pk_bf16_f32 v%d, v%d, v%d" % (d + 2 * x, a_, a_ + 1))
                    e("v_cvt_pk_bf16_f32 v%d, v%d, v%d" % (d + 2 * x + 1, a_ + 2, a_ + 3))
        own = e.label("Lown"); fin = e.label("Lpf")
        e("s_cmp_eq_u32 %s, %s" % (s("tq"), s("ks")))
        e("s_cbranch_scc1 %s" % own)
        for i in range(10):
            if i % 4 == 0: e("s_mov_b32 %s, %d" % (s("soff"), 1024 * i))
            e("buffer_store_dwordx4 %s, v%d, %s, %s offen offset:%d sc1" % (vr(PK + 4 * i, 4), HV, srd("B"), s("soff"), 1024 * (i % 4)))
        e("s_waitcnt vmcnt(0)")
        self.lin(s("t4"), [("mt", 16 * 128), ("nt", 4 * 128), ("tq", 128), ("ks", 8)], F_P)
        stt = e.state(); self.flag_store(s("t4"), 8); e.set_state(stt)
        e("s_branch %s" % fin)
        e("%s:" % own)
        e("v_add_u32 v1, %d, v%d" % (OBUF, HV))
        for i in range(10): e("ds_write_b128 v1, %s offset:%d" % (vr(PK + 4 * i, 4), 1024 * i))
        e("s_waitcnt lgkmcnt(0)")
        e("%s:" % fin)
        e.vm = []; e.lds = []
        self.stamp("pst")

    def attention_items(self):
        e = self.e; L = []
        a = lambda txt: L.append(lambda: e(txt))
        Q = 16; K0, V0 = 28, 108
        LG, PP, OA, TM = 188, 196, 200, 220
        AQ, AK, AV = 12, 13, 14
        a("s_and_b32 %s, %s, 1" % (s("t0"), s("tq")))
        a("s_lshl_b32 %s, %s, 6" % (s("t0"), s("t0")))
        a("v_add_u32 v15, %s, v0" % s("t0"))
        a("v_add_u32 v1, 14, v15")
        a("v_mul_u32_u24 v1, 48, v1")
        a("s_lshr_b32 %s, %s, 1" % (s("t1"), s("tq")))
        a("s_mul_i32 %s, %s, %d" % (s("t1"), s("t1"), ARR))
        a("v_add_u32 v%d, %s, v1" % (AQ, s("t1")))
        a("v_add_u32 v%d, %d, v%d" % (AK, 2 * ARR - 96 * 7, AQ))
        a("v_add_u32 v%d, %d, v%d" % (AV, 4 * ARR - 96 * 7, AQ))
        def rdrow(dst, areg, off, tok):
            L.append(lambda: e.ds("ds_read_b128 %s, v%d offset:%d" % (vr(dst, 4), areg, STASH + off), tok))
            L.append(lambda: e.ds("ds_read_b128 %s, v%d offset:%d" % (vr(dst + 4, 4), areg, STASH + off + 16), tok))
            L.append(lambda: e.ds("ds_read_b32 v%d, v%d offset:%d" % (dst + 8, areg, STASH + off + 32), tok))
        rdrow(Q, AQ, 0, "q")
        for w in range(8): rdrow(K0 + 10 * w, AK, 96 * (7 - w), ("k", w))
        a("s_lshl_b32 %s, %s, 7" % (s("t0"), s("mt")))
        a("v_add_u32 v2, %s, v15" % s("t0"))
        a("v_mov_b32 v%d, 0xf149f2ca" % TM)
        a("v_mov_b32 v%d, 0" % (TM + 1))
        a("v_mov_b32 v%d, 0" % LG)
        for w in range(1, 8):
            a("v_cmp_gt_u32 s[62:63], %d, v2" % (2 * w))
            if w == 1: a("s_nop 0")
            a("s_nop 0")
            a("v_cndmask_b32 v%d, v%d, v%d, s[62:63]" % (LG + w, TM + 1, TM))
        for w in range(8): rdrow(V0 + 10 * w, AV, 96 * (7 - w), ("v", w))
        L.append(lambda: e.wait(lds=["q"] + [("k", w) for w in range(8)]))
        for d in range(9):
            for w in range(8): a("v_dot2c_f32_bf16 v%d, v%d, v%d" % (LG + w, Q + d, K0 + 10 * w + d))
        for d in range(18): a("v_mov_b32 v%d, 0" % (OA + d))
        a("v_max3_f32 v%d, v%d, v%d, v%d" % (TM, LG, LG + 1, LG + 2))
        a("v_max3_f32 v%d, v%d, v%d, v%d" % (TM + 1, LG + 3, LG + 4, LG + 5))
        a("v_max3_f32 v%d, v%d, v%d, v%d" % (TM, TM, LG + 6, LG + 7))
        a("s_mov_b32 %s, 0x%08x" % (s("t0"), fbits((18 ** -0.5) * 1.4426950408889634)))
        a("v_max_f32 v%d, v%d, v%d" % (TM, TM, TM + 1))
        a("v_mul_f32 v%d, %s, v%d" % (TM, s("t0"), TM))
        for w in range(8): a("v_fma_f32 v%d, v%d, %s, -v%d" % (LG + w, LG + w, s("t0"), TM))
        for w in range(8): a("v_exp_f32 v%d, v%d" % (LG + w, LG + w))
        a("s_nop 0")
        a("v_add_f32 v%d, v%d, v%d" % (TM, LG, LG + 1))
        a("v_add_f32 v%d, v%d, v%d" % (TM + 1, LG + 2, LG + 3))
        a("v_add_f32 v%d, v%d, v%d" % (TM + 2, LG + 4, LG + 5))
        a("v_add_f32 v%d, v%d, v%d" % (TM + 3, LG + 6, LG + 7))
        a("v_add_f32 v%d, v%d, v%d" % (TM, TM, TM + 1))
        a("v_add_f32 v%d, v%d, v%d" % (TM + 2, TM + 2, TM + 3))
        a("s_mov_b32 %s, 0x05040100" % s("t0"))
        a("v_add_f32 v%d, v%d, v%d" % (TM, TM, TM + 2))
        a("s_mov_b32 %s, 0x07060302" % s("t1"))
        a("v_rcp_f32 v%d, v%d" % (TM, TM))
        a("s_nop 0")
        for w in range(8): a("v_mul_f32 v%d, v%d, v%d" % (LG + w, TM, LG + w))
        for p in range(4): a("v_cvt_pk_bf16_f32 v%d, v%d, v%d" % (PP + p, LG + 2 * p, LG + 2 * p + 1))
        L.append(lambda: e.wait(lds=[("v", w) for w in range(8)]))
        T2 = K0
        for p in range(4):
            for d0 in (0, 3, 6):
                for dd in range(d0, d0 + 3):
                    va, vb = V0 + 10 * (2 * p) + dd, V0 + 10 * (2 * p + 1) + dd
                    t = T2 + 2 * (dd - d0) + 6 * ((p * 3 + d0 // 3) & 1)
                    a("v_perm_b32 v%d, v%d, v%d, %s" % (t, vb, va, s("t0")))
                    a("v_perm_b32 v%d, v%d, v%d, %s" % (t + 1, vb, va, s("t1")))
                for dd in range(d0, d0 + 3):
                    t = T2 + 2 * (dd - d0) + 6 * ((p * 3 + d0 // 3) & 1)
                    a("v_dot2c_f32_bf16 v%d, v%d, v%d" % (OA + 2 * dd, t, PP + p))
                    a("v_dot2c_f32_bf16 v%d, v%d, v%d" % (OA + 2 * dd + 1, t + 1, PP + p))
        a("v_mul_u32_u24 v1, 80, v15")
        a("s_lshr_b32 %s, %s, 1" % (s("t1"), s("tq")))
        a("s_mul_i32 %s, %s, 36" % (s("t1"), s("t1")))
        a("v_add_u32 v1, %s, v1" % s("t1"))
        a("v_add_u32 v1, %d, v1" % OBUF)
        for dd in range(9): a("v_cvt_pk_bf16_f32 v%d, v%d, v%d" % (Q + dd, OA + 2 * dd, OA + 2 * dd + 1))
        for dd in range(9): L.append(lambda dd=dd: e.ds("ds_write_b32 v1, v%d offset:%d" % (Q + dd, 4 * dd), "ow"))
        return L

    def halo_addr(self):
        e = self.e
        for n in range(3):
            e("v_add_u32 v1, %d, v0" % (64 * n))
            e("v_min_u32 v1, 167, v1")
            e("v_lshlrev_b32 v%d, 4, v1" % (16 + n))
            e("v_mul_u32_u24 v2, 1561, v1")
            e("v_lshrrev_b32 v2, 16, v2")
            e("v_mul_u32_u24 v%d, 42, v2" % (20 + n))
            e("v_sub_u32 v1, v1, v%d" % (20 + n))
            e("v_mul_u32_u24 v2, %d, v2" % ARR)
            e("v_lshl_add_u32 v%d, v1, 4, v2" % (20 + n))
    def halo_publish(self):
        e = self.e
        self.halo_addr()
        for n in range(3):
            e("ds_read_b128 %s, v%d offset:%d" % (vr(24 + 4 * n, 4), 20 + n, STASH + 2 * ARR + 128 * 48))
        self.lin(s("t5"), [("mt", 16 * 4096), ("j", 4096)], HALO_OFF)
        e("s_waitcnt lgkmcnt(0)")
        for n in range(3):
            e("buffer_store_dwordx4 %s, v%d, %s, %s offen sc1" % (vr(24 + 4 * n, 4), 16 + n, srd("WS"), s("t5")))
        e("s_waitcnt vmcnt(0)")
        self.lin(s("t4"), [("mt", 16 * 128), ("j", 128)], F_HALO)
        self.flag_store(s("t4"), 16)
    def halo_fetch(self):
        e = self.e
        z = e.label("Lhz"); w = e.label("Lhw")
        self.halo_addr()
        e("s_cmp_eq_u32 %s, 0" % s("mt"))
        e("s_cbranch_scc1 %s" % z)
        self.lin(s("t5"), [("mt", 16 * 4096), ("j", 4096)], HALO_OFF - 16 * 4096)
        self.lin(s("t4"), [("mt", 16 * 128), ("j", 128)], F_HALO - 16 * 128)
        self.poll(1, s("t4"), 24)
        for n in range(3):
            e("buffer_load_dwordx4 %s, v%d, %s, %s offen sc1" % (vr(24 + 4 * n, 4), 16 + n, srd("WS"), s("t5")))
        e("s_waitcnt vmcnt(0)")
        e("s_branch %s" % w)
        e("%s:" % z)
        for r in range(12): e("v_mov_b32 v%d, 0" % (24 + r))
        e("%s:" % w)
        for n in range(3):
            e("ds_write_b128 v%d, %s offset:%d" % (20 + n, vr(24 + 4 * n, 4), STASH + 2 * ARR))
        e("s_waitcnt lgkmcnt(0)")

    def o_publish(self):
        e = self.e
        e("v_and_b32 v1, 15, v0")
        e("s_lshl_b32 %s, %s, 5" % (s("t0"), s("tq")))
        e("v_add_u32 v1, %s, v1" % s("t0"))
        e("v_mul_u32_u24 v1, 80, v1")
        e("v_lshrrev_b32 v2, 4, v0")
        e("v_lshl_add_u32 v1, v2, 3, v1")
        e("v_add_u32 v1, %d, v1" % OBUF)
        for m in range(2):
            e.ds("ds_read2_b64 %s, v1 offset0:%d offset1:%d" % (vr(16 + 4 * m, 4), 160 * m, 160 * m + 4), ("of", m))
        e("v_and_b32 v2, 31, v0")
        e("v_add_u32 v2, %s, v2" % s("t0"))
        e("v_mul_u32_u24 v2, 80, v2")
        e("v_add_u32 v2, %d, v2" % (OBUF + 64))
        e.ds("ds_read_b64 v[24:25], v2", "ot")
        self.lin(s("t0"), [("mt", 4 * 18 * 2048), ("tq", 18 * 2048)], O_OFF)
        self.make_srd("B", "pws", s("t0"), 18 * 2048)
        e("v_lshlrev_b32 v26, 4, v0")
        e("s_lshl_b32 %s, %s, 11" % (s("t1"), s("j")))
        e.wait(lds=[("of", 0), ("of", 1)])
        for m in range(2):
            e.vmem("buffer_store_dwordx4 %s, v26, %s, %s offen offset:%d sc1" % (vr(16 + 4 * m, 4), srd("B"), s("t1"), 1024 * m), "ost")
        e("s_lshr_b32 %s, %s, 3" % (s("t1"), s("j")))
        e("s_add_u32 %s, %s, 16" % (s("t1"), s("t1")))
        e("s_lshl_b32 %s, %s, 11" % (s("t1"), s("t1")))
        e("s_and_b32 %s, %s, 3" % (s("t2"), s("j")))
        e("s_lshl_b32 %s, %s, 8" % (s("t2"), s("t2")))
        e("s_add_u32 %s, %s, %s" % (s("t1"), s("t1"), s("t2")))
        e("s_bfe_u32 %s, %s, 0x10002" % (s("t2"), s("j")))
        e("s_lshl_b32 %s, %s, 3" % (s("t2"), s("t2")))
        e("s_add_u32 %s, %s, %s" % (s("t1"), s("t1"), s("t2")))
        e("v_and_b32 v1, 15, v0")
        e("v_lshlrev_b32 v1, 4, v1")
        e("v_bfe_u32 v2, v0, 4, 1")
        e("v_lshl_add_u32 v1, v2, 10, v1")
        e.wait(lds=["ot"])
        e("s_mov_b64 %s, exec" % s2("ex"))
        e("s_mov_b64 exec, 0xffffffff")
        e.vmem("buffer_store_dwordx2 v[24:25], v1, %s, %s offen sc1" % (srd("B"), s("t1")), "ost")
        e("s_mov_b64 exec, %s" % s2("ex"))

    def wo_dma(self, q):
        e = self.e
        e("s_add_u32 %s, %s, %d" % (s("t0"), s("tq"), 4 * q))
        e("s_mul_i32 %s, %s, %d" % (s("soff"), s("t0"), 36 * 1152))
        for it in self.dma9_list(self.L_DMA, "A", s("soff"), s("m0q"), G2[q % 3], ("wo", q)): self.run_item(it)

    def stage2_loader(self):
        e = self.e; o = self.o
        for it in self.wd_items(2): self.run_item(it)
        self.stash_write("S")
        if o.dump == "stash": self.dump_lds(STASH, 40960)
        att = self.attention_items()
        nchunk = o.att_chunks; u0 = o.att_first
        per = (len(att) + nchunk - 1) // nchunk
        def under(cond_tq, fn):
            lab = e.label("Lu")
            e("s_cmp_eq_u32 %s, %d" % (s("tq"), cond_tq))
            e("s_cbranch_scc0 %s" % lab)
            st = e.state(); fn(); e.set_state(st)
            e("%s:" % lab)
        uo = u0 + nchunk
        assert uo <= 7
        for u in range(9):
            e.wait(vm=[("wd", u)])
            e.wait_all(lds=True, vm=False)
            e("s_barrier")
            self.stamp("g%d" % u)
            if u >= 2 and u + 1 < 9:
                for it in self.wd_items(u + 1): self.run_item(it)
            if u == 0: under(0, self.halo_publish)
            if u == u0 - 1: under(1, self.halo_fetch)
            if u0 <= u < u0 + nchunk:
                for f in att[(u - u0) * per:(u - u0 + 1) * per]: f()
            if u == uo:
                self.o_publish()
                e.wait(vm=["ost"])
            if u == uo + 1:
                def ofl():
                    self.lin(s("t4"), [("mt", 128), ("j", 8)], F_O)
                    self.flag_store(s("t4"), 16)
                under(0, ofl)
            if u == 8:
                e("s_mul_i32 %s, %s, 288" % (s("t0"), s("nt")))
                self.make_srd("A", "po", s("t0"), 576 * 1152, s("t0"))
                self.lin(s("t4"), [("mt", 128)], F_O)
                self.poll(0xffff, s("t4"), 16)
                self.lin(s("t0"), [("mt", 4 * 18 * 2048), ("ks", 18 * 2048)], O_OFF)
                self.make_srd("B", "pws", s("t0"), 18 * 2048)
                e("v_lshlrev_b32 v16, 4, v0")
                for n in range(9):
                    if n % 4 == 0:
                        e("s_add_u32 m0, %s, %d" % (s("m0q"), STASH + 1024 * n))
                        e("s_add_u32 %s, %s, %d" % (s("soff"), s("m0q"), 1024 * n))
                    e.vmem("buffer_load_dwordx4 v16, %s, %s offen offset:%d sc1 lds" % (srd("B"), s("soff"), 1024 * (n % 4)), "oimg")
                self.wo_dma(0)
        e("s_barrier")
        self.stamp("tb1")
        self.wo_dma(1); self.wo_dma(2)
        self.pat_wo_tail_dma(16)

    def wo_and_final(self, loader):
        e = self.e; o = self.o
        FR, NFR = self.C_FR, self.C_NFR
        OF = 88
        SA = self.C_SACC
        RB = 208
        P = 16
        e("s_and_b32 %s, %s, 1" % (s("par"), s("wv")))
        e("s_lshr_b32 %s, %s, 1" % (s("t1"), s("wv")))
        e("s_lshl_b32 %s, %s, 1" % (s("t2"), s("t1")))
        e("s_add_u32 %s, %s, 1" % (s("t2"), s("t2")))
        e("s_cmp_eq_u32 %s, 0" % s("t1"))
        e("s_cselect_b32 %s, 0, %s" % (s("m0w"), s("t2")))
        e("s_cselect_b32 %s, 2, 1" % s("t3"))
        e("s_add_u32 %s, %s, %s" % (s("hoff"), s("t3"), s("m0w")))
        e("s_mov_b32 %s, %s" % (s("sehi"), s("t1")))
        e("v_lshrrev_b32 v1, 4, v0")
        e("v_bfe_u32 v2, v0, 2, 2")
        e("v_lshl_add_u32 v1, v1, 2, v2")
        e("v_mul_u32_u24 v1, 288, v1")
        e("v_and_b32 v2, 3, v0")
        e("v_lshl_add_u32 v1, v2, 3, v1")
        e("s_lshl_b32 %s, %s, 5" % (s("t2"), s("m0w")))
        e("s_lshl_b32 %s, %s, 5" % (s("t3"), s("hoff")))
        e("v_add_u32 v14, %s, v1" % s("t2"))
        e("v_add_u32 v15, %s, v1" % s("t3"))
        for b in range(3):
            e("v_add_u32 v%d, %d, v14" % (RB + b, G2[b]))
            e("v_add_u32 v%d, %d, v15" % (RB + 3 + b, G2[b]))
        XR, VX, VPA, VPB, RR = 214, 220, 223, 224, 225
        self.lin(s("t0"), [("mt", 128 * 1152), ("ks", 32 * 1152), ("nt", 288)])
        self.make_srd("X", "px", s("t0"), 2048 * 1152, s("t0"))
        self.make_srd("Q", "pout", s("t0"), 2048 * 1152, s("t0"))
        e("v_and_b32 v2, 15, v0")
        e("s_lshl_b32 %s, %s, 4" % (s("t1"), s("par")))
        e("v_add_u32 v2, %s, v2" % s("t1"))
        e("v_mul_u32_u24 v%d, 1152, v2" % RR)
        e("v_lshrrev_b32 v1, 4, v0")
        e("v_lshl_add_u32 v%d, v1, 3, v%d" % (RR, RR))
        for x in range(3):
            if x == 0: e("s_lshl_b32 %s, %s, 5" % (s("t3"), s("m0w")))
            elif x == 1: e("s_add_u32 %s, %s, 32" % (s("t3"), s("t3")))
            else: e("s_lshl_b32 %s, %s, 5" % (s("t3"), s("hoff")))
            e("v_add_u32 v%d, %s, v%d" % (VX + x, s("t3"), RR))
        e("s_lshl_b32 %s, %s, 5" % (s("t1"), s("ks")))
        e("v_add_u32 v2, %s, v2" % s("t1"))
        e("v_lshlrev_b32 v2, 3, v2")
        e("v_add_u32 v2, %d, v2" % (STATS + 4))
        e.ds("ds_read_b32 v%d, v2" % RR, "rr")
        if not loader:
            for x in range(3): e.vmem("buffer_load_dwordx2 %s, v%d, %s, 0 offen" % (vr(XR + 2 * x, 2), VX + x, srd("X")), "xr")
        e("s_cmp_eq_u32 %s, 0" % s("sehi"))
        e("s_cselect_b32 %s, 0, 1" % s("t0"))
        e("s_add_u32 %s, %s, %s" % (s("t0"), s("t0"), s("sehi")))
        e("s_mul_i32 %s, %s, 5" % (s("t1"), s("par")))
        e("s_add_u32 %s, %s, %s" % (s("t0"), s("t0"), s("t1")))
        e("s_lshl_b32 %s, %s, 10" % (s("t0"), s("t0")))
        e("v_lshlrev_b32 v1, 4, v0")
        e("v_add_u32 v%d, %s, v1" % (VPA, s("t0")))
        e("s_cmp_eq_u32 %s, 0" % s("sehi"))
        e("s_cselect_b32 %s, 1024, 8" % s("t1"))
        e("v_add_u32 v%d, %s, v%d" % (VPB, s("t1"), VPA))
        self.lin(s("t0"), [("mt", 64 * PUNIT), ("nt", 16 * PUNIT), ("ks", PUNIT)], PART_OFF)
        self.make_srd("W", "pws", s("t0"), 13 * PUNIT)
        def wo_group(kbs, b):
            steps = [(kb, x) for kb in kbs for x in range(3)]
            N = len(steps); D = 4
            fr = lambda n: FR + 4 * (n % NFR)
            for n in range(N + D):
                if n < N:
                    kb, x = steps[n]; kl = kb - kbs[0]
                    areg = RB + b if x < 2 else RB + 3 + b
                    off = kl * 9216 + (32 if x == 1 else 0)
                    e.ds("ds_read_b64_tr_b16 %s, v%d offset:%d" % (vr(fr(n), 2), areg, off), ("wf", kb, x))
                    e.ds("ds_read_b64_tr_b16 %s, v%d offset:%d" % (vr(fr(n) + 2, 2), areg, off + 16 * 288), ("wf", kb, x))
                if n >= D:
                    k = n - D; kb, x = steps[k]
                    e.wait(lds=[("wf", kb, x), ("o", kb)])
                    e("v_mfma_f32_16x16x32_bf16 %s, %s, %s, %s" % (vr(SA + 4 * x, 4), vr(fr(k), 4), vr(OF + 4 * kb, 4), "0" if kb == 0 else vr(SA + 4 * x, 4)))
        groups = [list(range(0, 4)), list(range(4, 8)), list(range(8, 12)), list(range(12, 16)), [16, 17]]
        for q in range(5):
            if loader:
                if q == 0: e.wait(vm=["oimg", ("wo", 0)])
                elif q < 4: e.wait(vm=[("wo", q)])
                else: e.wait_all(lds=False, vm=True)
            e.wait_all(lds=True, vm=False)
            e("s_barrier")
            self.stamp("wb%d" % q)
            if q == 0:
                e("s_lshl_b32 %s, %s, 10" % (s("t0"), s("par")))
                e("v_lshlrev_b32 v1, 4, v0")
                e("v_add_u32 v1, %s, v1" % s("t0"))
                for kb in range(18):
                    e.ds("ds_read_b128 %s, v1 offset:%d" % (vr(OF + 4 * kb, 4), STASH + 2048 * kb), ("o", kb))
            if loader and q == 1: self.wo_dma(3)
            if loader and q == 2:
                lab = e.label("Lw4")
                e("s_cmp_lt_u32 %s, 2" % s("tq"))
                e("s_cbranch_scc0 %s" % lab)
                e("s_mul_i32 %s, %s, %d" % (s("soff"), s("tq"), 288 * 1152))
                stt = e.state()
                for it in self.dma9_list(16, "A", s("soff"), s("m0q"), G2[1], ("wo", 4)): self.run_item(it)
                e.set_state(stt)
                e("%s:" % lab)
            wo_group(groups[q], q % 3)
        self.stamp("wod")
        if o.dump == "s":
            e("s_nop 7"); self.dump_regs(SA, 12); return
        if loader:
            for x in range(3): e.vmem("buffer_load_dwordx2 %s, v%d, %s, 0 offen" % (vr(XR + 2 * x, 2), VX + x, srd("X")), "xr")
        PA = 16
        e("v_add_u32 v1, %d, v%d" % (OBUF, VPA))
        e("v_add_u32 v2, %d, v%d" % (OBUF, VPB))
        e.ds("ds_read_b128 %s, v1" % vr(PA, 4), "pown")
        e.ds("ds_read_b64 %s, v2" % vr(PA + 4, 2), "pown")
        self.lin(s("t4"), [("mt", 16 * 128), ("nt", 4 * 128), ("ks", 128)], F_P)
        e("s_lshl_b32 %s, 1, %s" % (s("t0"), s("ks")))
        e("s_andn2_b32 %s, 15, %s" % (s("t5"), s("t0")))
        e("s_mov_b32 %s, 0" % s("t6"))
        self.poll(s2("t5"), s("t4"), 56)
        self.stamp("ppoll")
        for i in range(3):
            e("s_add_u32 %s, %s, %d" % (s("t0"), s("ks"), 1 + i))
            e("s_and_b32 %s, %s, 3" % (s("t0"), s("t0")))
            e("s_mul_i32 %s, %s, %d" % (s("soff"), s("t0"), 4 * PUNIT))
            e.vmem("buffer_load_dwordx4 %s, v%d, %s, %s offen sc1" % (vr(PA + 8 * (i + 1), 4), VPA, srd("W"), s("soff")), ("p", i))
            e.vmem("buffer_load_dwordx2 %s, v%d, %s, %s offen sc1" % (vr(PA + 8 * (i + 1) + 4, 2), VPB, srd("W"), s("soff")), ("p", i))
        G = 48
        e.wait(lds=["rr", "pown"])
        e("v_mul_f32 v%d, v%d, v%d" % (RR, RR, RR))
        for r in range(6):
            e("v_lshlrev_b32 v%d, 16, v%d" % (G + 2 * r, PA + r))
            e("v_and_b32 v%d, 0xffff0000, v%d" % (G + 2 * r + 1, PA + r))
        T = 64
        for i in range(3):
            e.wait(vm=[("p", i)])
            for r in range(6):
                e("v_lshlrev_b32 v%d, 16, v%d" % (T + 2 * r, PA + 8 * (i + 1) + r))
                e("v_and_b32 v%d, 0xffff0000, v%d" % (T + 2 * r + 1, PA + 8 * (i + 1) + r))
            for r in range(12): e("v_add_f32 v%d, v%d, v%d" % (G + r, G + r, T + r))
        for r in range(12): e("v_mul_f32 v%d, v%d, v%d" % (G + r, RR, G + r))
        e("s_mov_b32 %s, 0xbfb8aa3b" % s("t0"))
        for r in range(12): e("v_mul_f32 v%d, %s, v%d" % (T + r, s("t0"), G + r))
        for r in range(12): e("v_exp_f32 v%d, v%d" % (T + r, T + r))
        e("s_nop 0")
        for r in range(12): e("v_add_f32 v%d, 1.0, v%d" % (T + r, T + r))
        for r in range(12): e("v_rcp_f32 v%d, v%d" % (T + r, T + r))
        e("s_nop 0")
        for r in range(12): e("v_mul_f32 v%d, v%d, v%d" % (G + r, G + r, T + r))
        for x in range(3):
            for h in range(2):
                e("v_lshlrev_b32 v%d, 16, v%d" % (T + 4 * x + 2 * h, XR + 2 * x + h))
                e("v_and_b32 v%d, 0xffff0000, v%d" % (T + 4 * x + 2 * h + 1, XR + 2 * x + h))
        for r in range(12): e("v_fma_f32 v%d, v%d, v%d, v%d" % (G + r, SA + r, G + r, T + r))
        for x in range(3):
            for h in range(2):
                e("v_cvt_pk_bf16_f32 v%d, v%d, v%d" % (XR + 2 * x + h, G + 4 * x + 2 * h, G + 4 * x + 2 * h + 1))
        for x in range(3):
            e.vmem("buffer_store_dwordx2 %s, v%d, %s, 0 offen" % (vr(XR + 2 * x, 2), VX + x, srd("Q")), "out")

    def dump_lds(self, lds_off, nbytes):
        e = self.e
        e.wait_all()
        e("s_barrier")
        e("s_lshl_b32 %s, s2, 16" % s("t0"))
        e("s_add_u32 %s, %s, %d" % (s("t0"), s("t0"), DBG_OFF))
        e("s_lshl_b32 %s, %s, 10" % (s("t1"), s("wv")))
        e("v_lshlrev_b32 v1, 4, v0")
        e("v_add_u32 v1, %s, v1" % s("t1"))
        for it in range((nbytes + 8191) // 8192):
            e("ds_read_b128 v[4:7], v1 offset:%d" % (lds_off + 8192 * it))
            e("s_waitcnt lgkmcnt(0)")
            e("s_add_u32 %s, %s, %d" % (s("t2"), s("t0"), 8192 * it))
            e("buffer_store_dwordx4 v[4:7], v1, %s, %s offen" % (srd("WS"), s("t2")))
            e("s_waitcnt vmcnt(0)")
        e("s_endpgm")
    def dump_regs(self, first, count):
        e = self.e
        e.wait_all()
        e("s_lshl_b32 %s, s2, 19" % s("t0"))
        e("s_lshl_b32 %s, %s, 16" % (s("t1"), s("wv")))
        e("s_add_u32 %s, %s, %s" % (s("t0"), s("t0"), s("t1")))
        e("s_add_u32 %s, %s, %d" % (s("t0"), s("t0"), DBG_OFF))
        e("v_lshlrev_b32 v1, 2, v0")
        for r in range(count):
            e("buffer_store_dword v%d, v1, %s, %s offen" % (first + r, srd("WS"), s("t0")))
            e("s_add_u32 %s, %s, 256" % (s("t0"), s("t0")))
        e("s_waitcnt vmcnt(0)")
        e("s_endpgm")
    def write_stamps(self):
        if not self.o.stamps: return
        e = self.e
        self.stamp("end")
        lab = e.label("Lnost")
        e("s_and_b32 %s, %s, 3" % (s("t0"), s("wv")))
        e("s_cmp_eq_u32 %s, 0" % s("t0"))
        e("s_cbranch_scc0 %s" % lab)
        e("s_lshl_b32 %s, s2, 8" % s("t0"))
        e("s_lshl_b32 %s, %s, 5" % (s("t1"), s("wv")))
        e("s_add_u32 %s, %s, %s" % (s("t0"), s("t0"), s("t1")))
        e("s_add_u32 %s, %s, %d" % (s("t0"), s("t0"), STAMP_OFF))
        e("v_mov_b32 v1, 0")
        for i in range(len(self.o.stamp_tags)):
            e("v_mov_b32 v2, s%d" % (S["stamp"] + 2 + i))
            e("buffer_store_dword v2, v1, %s, %s offen offset:%d" % (srd("WS"), s("t0"), 4 * i))
        e("%s:" % lab)

    def build(self):
        e = self.e; o = self.o
        self.prologue()
        self.stage1_common()
        e("s_cbranch_vccz L_helper")
        st = e.state()
        self.stage1_role("D")
        self.stage2_compute()
        self.wo_and_final(False)
        self.write_stamps()
        e("s_endpgm")
        e("L_helper:")
        e.set_state(st); e.vm = []
        self.stage1_role("S")
        self.stage2_loader()
        self.wo_and_final(True)
        self.write_stamps()
        e("L_exit:")
        e("s_endpgm")
        e("L_code_end:")
        return e.text()

HEADER = """; Fused LayerNorm + ReGLU MLP + dilated sliding-window attention + gated output, one persistent launch.
; Kernarg: x, wqkv, wo, B_x (unused), W_gate, W_up, W_down, out, debug, ws
; 256 workgroups (one per CU) x 8 waves; workgroups hand data over through ws with per-launch nonce flags.
; @launch grid=(256,1,1) block=(512,1,1) lds=%d
""" % LDS_SIZE
def full_text(body, name=NAME):
    return HEADER + """.amdgcn_target "amdgcn-amd-amdhsa--gfx950"
.text
.globl %s
.p2align 8
.type %s,@function
%s:
%s
.section .rodata,"a"
.p2align 6
.amdhsa_kernel %s
  .amdhsa_next_free_vgpr 256
  .amdhsa_next_free_sgpr 102
  .amdhsa_accum_offset 256
  .amdhsa_group_segment_fixed_size 0
  .amdhsa_kernarg_size 80
  .amdhsa_user_sgpr_count 2
  .amdhsa_user_sgpr_kernarg_segment_ptr 1
  .amdhsa_system_sgpr_workgroup_id_x 1
  .amdhsa_float_denorm_mode_32 3
.end_amdhsa_kernel
""" % (name, name, name, body, name)

def main(argv=None):
    import argparse
    ap = argparse.ArgumentParser()
    ap.add_argument("-o", default="out.s")
    ap.add_argument("--tags", default="")
    ap.add_argument("--dump", default=None)
    ap.add_argument("--set", action="append", default=[])
    a = ap.parse_args(argv)
    o = Opt()
    if a.tags: o.stamps = True; o.stamp_tags = tuple(a.tags.split(","))
    o.dump = a.dump
    for kv in a.set:
        k, v_ = kv.split("=")
        cur = getattr(o, k)
        setattr(o, k, (v_ not in ("0", "False", "")) if isinstance(cur, bool) else type(cur)(v_))
    g = Gen(o)
    open(a.o, "w").write(full_text(g.build()))
if __name__ == "__main__":
    main()
```
